```python
import torch

def _softmax(x, axis=-1):
    return torch.softmax(x, dim=axis)
def _gelu(x):
    return torch.nn.functional.gelu(x, approximate="tanh")
def _silu(x):
    return torch.nn.functional.silu(x)
def _sigmoid(x):
    return torch.sigmoid(x)
def _layernorm(x, axis=-1, eps=1e-5):
    m = x.mean(dim=axis, keepdim=True)
    v = x.var(dim=axis, keepdim=True, unbiased=False)
    return (x - m) / torch.sqrt(v + eps)
def _scatter_add(tgt, idx, src, axis=0):
    return tgt.clone().index_add_(axis, idx, src)
def _segment_sum(src, seg, n):
    out = torch.zeros((n,) + src.shape[1:], dtype=src.dtype)
    return out.index_add_(0, seg, src)
def _pad(x, pw):
    flat = tuple(v for pair in reversed(pw) for v in pair)
    return torch.nn.functional.pad(x, flat)

kernel_name = 'standalone__gqa_block_cached__near_ridge'

def setup_inputs():

    _w = (lambda a: (lambda t: t.to(torch.bfloat16) if t.is_floating_point() else t)(torch.as_tensor(a)))
    B, Sq, D = 8, 192, 640
    Hq, Hkv, Sk, Dh = 32, 32, 512, 192
    assert Hq % Hkv == 0, (Hq, Hkv)
    return {
        "x": _w((lambda *s: torch.randn(*s, dtype=torch.bfloat16) * 0.8)(B, Sq, D)),
        "k_cache": _w((lambda *s: torch.randn(*s, dtype=torch.bfloat16) * 0.8)(B, Hkv, Sk, Dh)),
        "v_cache": _w((lambda *s: torch.randn(*s, dtype=torch.bfloat16) * 0.05)(B, Hkv, Sk, Dh)),
        "wq": _w((lambda *s: torch.randn(*s, dtype=torch.bfloat16) * 0.8)(D, Hq * Dh) * (D ** -0.5)),
        "wo": _w((lambda *s: torch.randn(*s, dtype=torch.bfloat16) * 0.05)(Hq * Dh, D) * ((Hq * Dh) ** -0.5)),
    }

def reference(x, k_cache, v_cache, wq, wo):
    B, Sq, D = x.shape
    Hq, Dh = 32, 192
    Hkv = k_cache.shape[1]
    rep = Hq // Hkv
    q = (lambda x, *d: x.permute(*d))((x @ wq).reshape(B, Sq, Hq, Dh), 0, 2, 1, 3)
    k = (lambda x, n, axis: torch.repeat_interleave(x, n, dim=axis))(k_cache, rep, axis=1)
    v = (lambda x, n, axis: torch.repeat_interleave(x, n, dim=axis))(v_cache, rep, axis=1)
    scores = torch.einsum("bhqd,bhkd->bhqk", q, k) * (Dh ** -0.5)
    p = _softmax(scores, axis=-1)
    o = torch.einsum("bhqk,bhkd->bhqd", p, v)
    return (lambda x, *d: x.permute(*d))(o, 0, 2, 1, 3).reshape(B, Sq, Hq * Dh) @ wo
```

```python
import re

def R(kind, lo, n=1):
    return [(kind, lo + i) for i in range(n)]

def rs(kind, lo, n=1):
    if n == 1:
        return f"{kind}{lo}"
    return f"{kind}[{lo}:{lo+n-1}]"

class I:
    __slots__ = ("text", "kind", "rd", "wr", "cost", "tag", "srcc", "extra")
    def __init__(self, text, kind, rd=(), wr=(), cost=None, tag=None, srcc=(), extra=None):
        self.text = text; self.kind = kind
        self.rd = list(rd); self.wr = list(wr); self.tag = tag; self.srcc = list(srcc)
        self.extra = extra
        if cost is None:
            cost = {"valu": 4, "trans": 8, "ds": 4, "dsw": 4, "vmem": 4, "dma": 4, "store": 4, "perm": 4}.get(kind, 0)
        self.cost = cost
    def __repr__(self):
        return self.text

def mfma(dk, d, ak, a, bk, b, ck, c):
    if ck is None:
        cs = "0"; crd = []
    else:
        cs = rs(ck, c, 4); crd = R(ck, c, 4)
    t = f"v_mfma_f32_16x16x32_bf16 {rs(dk,d,4)}, {rs(ak,a,4)}, {rs(bk,b,4)}, {cs}"
    return I(t, "mfma", R(ak, a, 4) + R(bk, b, 4) + crd, R(dk, d, 4), srcc=crd)

def ds_tr(dk, d, addr, off, tag=None):
    assert 0 <= off < 65536, off
    return I(f"ds_read_b64_tr_b16 {rs(dk,d,2)}, v{addr} offset:{off}", "ds", [("v", addr)], R(dk, d, 2), tag=tag)

def ds_b128(dk, d, addr, off, tag=None):
    assert 0 <= off < 65536, off
    return I(f"ds_read_b128 {rs(dk,d,4)}, v{addr} offset:{off}", "ds", [("v", addr)], R(dk, d, 4), tag=tag)

def _opnd(x):
    if isinstance(x, tuple):
        return rs(x[0], x[1]), [x]
    if isinstance(x, int):
        if -16 <= x <= 64: return str(x), []
        return hex(x & 0xffffffff), []
    return str(x), []

def valu(op, d, *src, kind="valu", extra_rd=(), extra_wr=(), mods=""):
    ts = []; rd = []
    for s in src:
        t, r = _opnd(s); ts.append(t); rd += r
    dt, _ = _opnd(d)
    return I(f"{op} {dt}, " + ", ".join(ts) + mods, kind, rd + list(extra_rd), [d] + list(extra_wr))

def v(n): return ("v", n)
def s(n): return ("s", n)
def a(n): return ("a", n)

def vexp(d, x): return valu("v_exp_f32", v(d), v(x), kind="trans")
def vrcp(d, x): return valu("v_rcp_f32", v(d), v(x), kind="trans")
def vcvt(d, x, y): return valu("v_cvt_pk_bf16_f32", v(d), v(x), v(y))
def vadd(d, x, y): return valu("v_add_f32", v(d), x, y)
def vpkmul(d, x, y, ysame=True):
    return I(f"v_pk_mul_f32 v[{d}:{d+1}], v[{x}:{x+1}], v[{y}:{y+1}] op_sel_hi:[1,0]", "valu",
             R("v", x, 2) + R("v", y, 2), R("v", d, 2))
def swap16(x, y):
    return I(f"v_permlane16_swap_b32 v{x}, v{y}", "perm", [v(x), v(y)], [v(x), v(y)])
def swap32(x, y):
    return I(f"v_permlane32_swap_b32 v{x}, v{y}", "perm", [v(x), v(y)], [v(x), v(y)])
def accw(d, x): return valu("v_accvgpr_write_b32", a(d), v(x))
def accr(d, x): return valu("v_accvgpr_read_b32", v(d), a(x))

def salu(op, d, *src, scc=True):
    ts = []; rd = []
    for x in src:
        if x == "m0": ts.append("m0"); rd.append(("m0", 0)); continue
        t, r = _opnd(x); ts.append(t); rd += r
    if d == "m0":
        dt = "m0"; wr = [("m0", 0)]
    else:
        dt, _ = _opnd(d); wr = [d]
    if scc: wr = wr + [("scc", 0)]
    return I(f"{op} {dt}, " + ", ".join(ts), "salu", rd, wr)
def smov(d, x): return salu("s_mov_b32", d, x, scc=False)

def raw(text, kind="salu", rd=(), wr=(), **kw):
    return I(text, kind, rd, wr, **kw)

def dma(voff, srd, soff, imm=0, flags="", tag=None):
    so, r = _opnd(soff)
    f = (" " + flags) if flags else ""
    o = f" offset:{imm}" if imm else ""
    return I(f"buffer_load_dwordx4 v{voff}, {rs('s',srd,4)}, {so} offen{o}{f} lds", "dma",
             [v(voff), ("m0", 0)] + R("s", srd, 4) + r, [], tag=tag)

def gload(dk, d, n, voff, srd, soff, imm=0, flags="", tag=None):
    so, r = _opnd(soff)
    f = (" " + flags) if flags else ""
    o = f" offset:{imm}" if imm else ""
    suf = {1: "dword", 2: "dwordx2", 3: "dwordx3", 4: "dwordx4"}[n]
    return I(f"buffer_load_{suf} {rs(dk,d,n)}, v{voff}, {rs('s',srd,4)}, {so} offen{o}{f}", "vmem",
             [v(voff)] + R("s", srd, 4) + r, R(dk, d, n), tag=tag)

def gstore(dk, d, n, voff, srd, soff, imm=0, flags="", tag=None):
    so, r = _opnd(soff)
    f = (" " + flags) if flags else ""
    o = f" offset:{imm}" if imm else ""
    suf = {1: "dword", 2: "dwordx2", 3: "dwordx3", 4: "dwordx4"}[n]
    return I(f"buffer_store_{suf} {rs(dk,d,n)}, v{voff}, {rs('s',srd,4)}, {so} offen{o}{f}", "store",
             [v(voff)] + R("s", srd, 4) + r + R(dk, d, n), [], tag=tag, extra=R(dk, d, n) if n >= 3 else None)

def wait_tag(*tags):
    return I("; wait_tag " + ",".join(map(str, tags)), "waittag", tag=tags)
def barrier(release=()): return I("s_barrier", "barrier", extra=set(release))
def label(name): return I(name + ":", "label")
def nop(n): return I(f"s_nop {n}", "nop", extra=n)
def comment(t): return I("; " + t, "comment")

VEC = ("valu", "trans", "perm", "ds", "dsw", "vmem", "dma", "store")

class Item:
    __slots__ = ("ins", "earliest", "deadline", "prio", "after", "gap", "q")
    def __init__(self, ins, earliest, deadline, prio, after, q):
        self.ins = ins; self.earliest = earliest; self.deadline = deadline; self.prio = prio
        self.after = after; self.gap = None; self.q = q

class Block:
    def __init__(self):
        self.mf = []
        self.queues = {}
    def add_mfma(self, ins):
        self.mf.append(ins); return len(self.mf) - 1
    def fill(self, q, ins, earliest=-1, deadline=None, prio=None, after=()):
        if not isinstance(ins, list): ins = [ins]
        d = deadline if deadline is not None else 10**9
        it = Item(ins, earliest, d, prio if prio is not None else d, list(after), q)
        self.queues.setdefault(q, []).append(it)
        return it
    def schedule(self, budget=8, verbose=False):
        n = len(self.mf)
        gaps = {g: [] for g in range(-1, n)}
        qs = {k: list(vv) for k, vv in self.queues.items()}
        changed = True
        while changed:
            changed = False
            for k, lst in qs.items():
                for i in range(len(lst) - 1, -1, -1):
                    it = lst[i]
                    if i + 1 < len(lst) and lst[i + 1].deadline < it.deadline:
                        it.deadline = lst[i + 1].deadline; changed = True
                    for (dep, dist) in it.after:
                        if dep.gap is None and it.deadline - dist < dep.deadline:
                            dep.deadline = it.deadline - dist; changed = True
        over = 0
        for g in range(-1, n):
            vb = budget if g >= 0 else 0
            sb = 1 if g >= 0 else 0
            last = (g == n - 1)
            while True:
                cand = []
                for k, lst in qs.items():
                    if not lst: continue
                    it = lst[0]
                    if any(dep.gap is None for dep, _ in it.after): continue
                    if not last:
                        if it.earliest > g: continue
                        if any(g < dep.gap + dist for dep, dist in it.after): continue
                    cand.append((0 if it.deadline <= g else 1, min(it.prio, it.deadline), k))
                if not cand: break
                cand.sort()
                placed = False
                for _, _, k in cand:
                    it = qs[k][0]; ins = it.ins
                    vc = sum(x.cost for x in ins if x.kind in VEC)
                    sc = sum(1 for x in ins if x.kind not in VEC and x.kind != "comment")
                    need_v = vc + 4 * max(0, sc - sb)
                    if need_v <= vb or it.deadline <= g or last:
                        if need_v > vb: over += need_v - max(vb, 0)
                        if it.deadline < g: print(f"WARNING deadline missed q={k} gap={g} deadline={it.deadline} {ins[0]}")
                        vb -= need_v; sb = max(0, sb - sc)
                        it.gap = g
                        gaps[g].append(it); qs[k].pop(0); placed = True
                        break
                if not placed: break
        for k, lst in qs.items():
            assert not lst, (k, lst[0].ins)
        out = []
        def order(items):
            def cls(ins):
                kinds = [x.kind for x in ins]
                if "barrier" in kinds or "waittag" in kinds: return 0
                if all(kk not in VEC for kk in kinds): return 1
                if any(kk in ("ds", "dsw", "vmem", "dma", "store") for kk in kinds): return 2
                return 3
            res = []
            pend = list(items)
            while pend:
                heads = {}
                for idx, it in enumerate(pend):
                    if it.q not in heads: heads[it.q] = idx
                ok = [i for i in heads.values() if not any(dep in pend for dep, _ in pend[i].after)]
                best = min(ok, key=lambda i: (cls(pend[i].ins), i))
                res += pend[best].ins; pend.pop(best)
            return res
        out += order(gaps[-1])
        for g in range(n):
            out.append(self.mf[g]); out += order(gaps[g])
        self.over = over
        return out

def insert_waits(prog, hoist=True):
    out = []
    lg = []
    vm = []
    released = set()
    def emit_wait(lgn, vmn, consumer):
        parts = []
        if vmn is not None: parts.append(f"vmcnt({vmn})")
        if lgn is not None: parts.append(f"lgkmcnt({lgn})")
        w = I("s_waitcnt " + " ".join(parts), "wait", extra=(lgn, vmn))
        pos = len(out)
        if hoist and consumer.kind == "mfma":
            p = len(out); l2 = lgn; v2 = vmn; ok = True
            while p > 0 and out[p - 1].kind != "mfma":
                k = out[p - 1].kind
                if k in ("label", "barrier", "branch"): ok = False; break
                if k in ("ds", "dsw") and l2 is not None:
                    if l2 == 0: ok = False; break
                    l2 -= 1
                if k in ("vmem", "dma", "store") and v2 is not None:
                    if v2 == 0: ok = False; break
                    v2 -= 1
                p -= 1
            if ok and p > 0:
                parts = []
                if v2 is not None: parts.append(f"vmcnt({v2})")
                if l2 is not None: parts.append(f"lgkmcnt({l2})")
                w = I("s_waitcnt " + " ".join(parts), "wait", extra=(l2, v2))
                pos = p
        out.insert(pos, w)
    for ins in prog:
        touched = set(ins.rd) | set(ins.wr)
        lgn = None; vmn = None
        if ins.kind == "waittag":
            idx = -1
            for i, (rg, tg) in enumerate(vm):
                if tg in ins.tag or "ALL" in ins.tag: idx = i
            if idx >= 0:
                vmn = len(vm) - 1 - idx
            if "LGKM" in ins.tag and lg:
                lgn = 0
        else:
            idx = -1
            for i, (rg, tg) in enumerate(lg):
                if rg & touched: idx = i
                if ins.kind == "barrier" and ins.extra and tg in ins.extra: idx = i
            if idx >= 0: lgn = len(lg) - 1 - idx
            if ins.kind == "barrier" and ins.extra: released |= ins.extra
            if ins.kind == "ds": assert ins.tag is None or ins.tag not in released, ("read of released slot", ins.tag)
            idx = -1
            for i, (rg, tg) in enumerate(vm):
                if rg & touched: idx = i
            if idx >= 0: vmn = len(vm) - 1 - idx
        if lgn is not None:
            assert lgn <= 15 or True
            lg = lg[len(lg) - lgn:] if lgn > 0 else []
            if lgn > 15: lgn = 15
        if vmn is not None:
            vm = vm[len(vm) - vmn:] if vmn > 0 else []
            if vmn > 63: vmn = 63
        if lgn is not None or vmn is not None:
            emit_wait(lgn, vmn, ins)
        if ins.kind == "waittag": continue
        if ins.kind == "wait" and ins.extra is not None:
            l0, v0 = ins.extra
            if l0 is not None: lg = lg[len(lg) - l0:] if l0 > 0 else []
            if v0 is not None: vm = vm[len(vm) - v0:] if v0 > 0 else []
        out.append(ins)
        if ins.kind == "ds": lg.append((set(ins.wr), ins.tag))
        elif ins.kind == "dsw": lg.append((set(), ins.tag))
        elif ins.kind in ("vmem", "dma", "store"): vm.append((set(ins.wr), ins.tag))
    return out

def waitcnt(lgkm=None, vm=None):
    parts = []
    if vm is not None: parts.append(f"vmcnt({vm})")
    if lgkm is not None: parts.append(f"lgkmcnt({lgkm})")
    return I("s_waitcnt " + " ".join(parts), "wait", extra=(lgkm, vm))

def fix_hazards(prog, verbose=False):
    out = []
    t = 0; last_mfma_t = -100
    hist = []
    added = 0
    for ins in prog:
        if ins.kind in ("comment", "label"):
            out.append(ins); continue
        tt = t + 1
        if ins.kind == "mfma": tt = max(tt, last_mfma_t + 4)
        need = tt
        rd = set(ins.rd); wr = set(ins.wr)
        isvalu = ins.kind in ("valu", "trans", "perm")
        for (pt, p) in hist[-24:]:
            pw = set(p.wr); w = 0
            pvalu = p.kind in ("valu", "trans", "perm")
            vw = {x for x in pw if x[0] in ("v", "a")}
            sw = {x for x in pw if x[0] in ("s", "vcc")}
            if pvalu and ins.kind == "mfma" and vw & rd: w = max(w, 2)
            if p.kind == "mfma":
                if ins.kind == "mfma":
                    ab = rd - set(ins.srcc)
                    if pw & ab: w = max(w, 8)
                    sc = set(ins.srcc)
                    if (pw & sc) and pw != sc: w = max(w, 6)
                    if (pw & wr) and not (pw & sc): w = max(w, 6)
                elif ins.kind in VEC:
                    if pw & (rd | wr): w = max(w, 8)
                if isvalu and set(p.srcc) & wr: w = max(w, 3)
            if p.kind == "trans" and isvalu and ins.kind != "trans" and vw & rd: w = max(w, 1)
            if p.kind == "trans" and ins.kind in ("store", "dsw", "ds", "vmem", "dma") and vw & rd: w = max(w, 1)
            if pvalu and ins.kind == "perm" and vw & rd: w = max(w, 2)
            if pvalu and "readfirstlane" in ins.text and vw & rd: w = max(w, 1)
            if pvalu and "readlane" in ins.text and vw & rd: w = max(w, 1)
            if pvalu and "dpp" in ins.text and vw & rd: w = max(w, 2)
            if pvalu and sw & rd:
                if ins.kind in ("vmem", "dma", "store"): w = max(w, 5)
                elif isvalu: w = max(w, 2)
                else: w = max(w, 1)
            if p.kind == "salu" and ("m0", 0) in pw and ins.kind == "dma": w = max(w, 1)
            if p.kind == "store" and p.extra and (set(p.extra) & wr): w = max(w, 2)
            if w: need = max(need, pt + w + 1)
        if need > tt:
            n = need - (t + 1)
            while n > 0:
                k = min(n, 16)
                out.append(nop(k - 1)); t += k; n -= k; added += k
            tt = max(t + 1, need)
        out.append(ins)
        t = tt
        if ins.kind == "nop": t += ins.extra
        if ins.kind == "mfma": last_mfma_t = tt
        hist.append((tt, ins))
    if verbose: print("hazard nops added:", added)
    return out

def text(prog):
    lines = []
    for ins in prog:
        if ins.kind == "label": lines.append(ins.text)
        else: lines.append("  " + ins.text)
    return "\n".join(lines)

def estimate_cycles(prog):
    t = 0; mf = -100
    for ins in prog:
        k = ins.kind
        if k in ("comment", "label"): continue
        if k == "mfma":
            t = max(t, mf + 16); mf = t; t += 4
        elif k in VEC:
            t = max(t, mf + 8); t += max(ins.cost, 4)
        elif k == "nop": t += 4 * (ins.extra + 1)
        else: t += 4
    return t
```

```python
import sys, math
sys.path.insert(0, "gen")
from asmlib import *

SLOT = 12288; NSLOT = 13
LDS_BYTES = 163840
OBUF_CU = 73728
PART_OFF = 32 << 20
PART_CU = 122880

class Cfg:
    NXP = 3
    pull = [0, 0, 2, 3, 5, 6, 8, 9, 11, 12]
    LEAD = 7
    EARLY = 13
    kv_flags = "nt"
    w_flags = ""
    x_flags = ""
    DMA_SP = 2
cfg = Cfg()

S_X, S_WQ, S_K, S_V, S_WO, S_OB, S_PB, S_OUT = 4, 8, 12, 16, 20, 24, 28, 32
S_W, S_W3, S_B, S_H, S_G, S_J, S_W6 = 36, 37, 38, 39, 40, 41, 42
S_SO = 44
S_T = 48
S_HO = 64
S_PTR = 72
V_TR, V_KR, V_XR = 4, 8, 10
V_DW, V_DK, V_DV, V_DO, V_DO2, V_DX = 12, 13, 14, 15, 16, 17
V_LIN = 19
V_T = 20
V_L = 28
V_NM = 32
V_S = 48
V_ACC = 96
V_T2 = 240
A_FR = 0
A_Q = 48
A_X = 112

SCALE = math.log2(math.e) / math.sqrt(192.0)
def f2u(x):
    import struct
    return struct.unpack("<I", struct.pack("<f", x))[0]

class AddrSet:
    def __init__(self, regs):
        self.regs = regs; self.base = 0
    def need(self, lo, hi):
        if lo >= self.base and hi - self.base < 65536: return []
        nb = lo
        out = [valu("v_add_u32", v(r), (nb - self.base) & 0xffffffff, v(r)) for r in self.regs]
        self.base = nb
        return out

class Ring:
    def __init__(self, nxp):
        self.freex = [2 * i for i in range(nxp)]
        self.free = list(range(2 * nxp, NSLOT))
        self.pos = {}
        self.xreq = []; self.req = []
        self.when = {}
        self.sorot = 0
    def release(self, name):
        p = self.pos[name]
        if name[0] == "X":
            if self.xreq: self.freex.append(p)
            else: self.free += [p, p + 1]
        else:
            self.free.append(p)
    def take(self):
        got = []
        while self.xreq and self.freex:
            n = self.xreq.pop(0); self.pos[n] = self.freex.pop(0); got.append(n)
        if not self.xreq and self.freex:
            for p in self.freex: self.free += [p, p + 1]
            self.freex = []
        while self.req and self.free:
            n = self.req.pop(0); self.pos[n] = self.free.pop(0); got.append(n)
        got.sort(key=lambda n: self.when[n])
        return got
    def so(self):
        self.sorot = (self.sorot + 1) % 4
        return S_SO + self.sorot
    def dma_items(self, name):
        kind, idx = name
        base = self.pos[name] * SLOT
        items = []
        if kind == "X":
            for i in range(6):
                pre = []
                if i % 2 == 0:
                    so = self.so(); pre.append(smov(s(so), idx * 128 + (i // 2) * 20480))
                pre.append(salu("s_add_u32", "m0", s(S_W6), base + i * 1024))
                items.append((pre, dma(V_DX + (i & 1), S_X, s(so), 0, cfg.x_flags, tag=name)))
            return items
        so = self.so()
        for j in range(3):
            pre = []
            if j == 0:
                if kind == "W": pre.append(smov(s(so), idx * 32 * 12288))
                elif kind in "KV": pre.append(smov(s(so), idx * 32 * 384))
                elif kind == "O": pre.append(salu("s_add_u32", s(so), s(S_HO + 4 + idx // 6), (idx % 6) * 32 * 1280))
            pre.append(salu("s_add_u32", "m0", s(S_W3), base + j * 896))
            vo, srd, fl = {"W": (V_DW, S_WQ, cfg.w_flags), "K": (V_DK, S_K, cfg.kv_flags), "V": (V_DV, S_V, cfg.kv_flags),
                           "O": (V_DO if j < 2 else V_DO2, S_WO, cfg.w_flags)}[kind]
            items.append((pre, dma(vo, srd, s(so), j * 128, fl, tag=name)))
        return items
    def pump_plain(self):
        out = []
        for n in self.take():
            for pre, d in self.dma_items(n):
                out += pre + [d]
        return out
    def pump_block(self, blk, g0, gend, after):
        its = []
        for n in self.take(): its += self.dma_items(n)
        if not its: return
        sp = min(cfg.DMA_SP, max(1, (gend - g0) // max(1, len(its))))
        prev = None
        for k, (pre, d) in enumerate(its):
            e = g0 + k * sp
            last = None
            for x in pre:
                dep = list(after) if prev is None else [(prev, 0)]
                last = blk.fill("dma", x, earliest=e, prio=e, deadline=gend, after=dep)
            prev = blk.fill("dma", d, earliest=e + 1, prio=e + 1, deadline=gend, after=[(last, 1)])

def srd(dst, ptr, off_sregs, nrec):
    out = []
    if off_sregs is None:
        out += [smov(s(dst), s(ptr)), smov(s(dst + 1), s(ptr + 1))]
    else:
        out += [salu("s_add_u32", s(dst), s(ptr), s(off_sregs)),
                raw(f"s_addc_u32 s{dst+1}, s{ptr+1}, 0", rd=[s(ptr + 1), ("scc", 0)], wr=[s(dst + 1), ("scc", 0)])]
    out.append(smov(s(dst + 2), nrec))
    out.append(smov(s(dst + 3), 0x20000))
    return out

def common_prologue(nwg):
    p = []
    p.append(raw(f"s_cmp_ge_u32 s2, {nwg}", wr=[("scc", 0)]))
    p.append(raw("s_cbranch_scc1 L_end_%KN%", kind="branch"))
    p.append(raw(f"s_load_dwordx16 s[{S_PTR}:{S_PTR+15}], s[0:1], 0", wr=R("s", S_PTR, 16)))
    p.append(valu("v_lshrrev_b32", v(1), 6, v(0)))
    p.append(valu("v_and_b32", v(0), 63, v(0)))
    p.append(valu("v_readfirstlane_b32", s(S_W), v(1)))
    p.append(valu("v_lshlrev_b32", v(V_LIN), 4, v(0)))
    p.append(salu("s_and_b32", s(S_G), s(2), 7))
    p.append(salu("s_lshr_b32", s(S_T), s(2), 3))
    p.append(salu("s_and_b32", s(S_J), s(S_T), 3))
    p.append(salu("s_lshr_b32", s(S_B), s(S_T), 2))
    p.append(salu("s_lshl_b32", s(S_H), s(S_G), 2))
    p.append(salu("s_add_u32", s(S_H), s(S_H), s(S_J)))
    p.append(salu("s_mul_i32", s(S_W3), s(S_W), 3072, scc=False))
    p.append(salu("s_mul_i32", s(S_W6), s(S_W), 6144, scc=False))
    return p

def lane_addr_tr():
    T = V_T; p = []
    p.append(valu("v_lshrrev_b32", v(T), 2, v(0)))
    p.append(valu("v_lshrrev_b32", v(T + 1), 3, v(T)))
    p.append(valu("v_mul_u32_u24", v(T + 1), 3072, v(T + 1)))
    p.append(valu("v_and_b32", v(T + 2), 7, v(T)))
    p.append(valu("v_lshl_add_u32", v(T + 1), v(T + 2), 7, v(T + 1)))
    p.append(valu("v_and_b32", v(T + 2), 3, v(0)))
    p.append(valu("v_lshl_add_u32", v(T + 1), v(T + 2), 3, v(T + 1)))
    p.append(valu("v_bfe_u32", v(T + 2), v(T), 1, 2))
    for e in range(4):
        p.append(valu("v_xor_b32", v(T + 3), e, v(T + 2)))
        p.append(valu("v_lshl_add_u32", v(V_TR + e), v(T + 3), 5, v(T + 1)))
    return p

def lane_addr_kx():
    T = V_T; p = []
    p.append(valu("v_and_b32", v(T), 15, v(0)))
    p.append(valu("v_lshrrev_b32", v(T + 1), 1, v(T)))
    p.append(valu("v_add_u32", v(T + 1), 6, v(T + 1)))
    p.append(valu("v_and_b32", v(T + 1), 7, v(T + 1)))
    p.append(valu("v_lshrrev_b32", v(T + 2), 4, v(0)))
    p.append(valu("v_and_b32", v(T + 3), 7, v(T)))
    p.append(valu("v_lshlrev_b32", v(T + 3), 7, v(T + 3)))
    p.append(valu("v_lshrrev_b32", v(T + 4), 3, v(T)))
    p.append(valu("v_lshl_add_u32", v(T + 5), v(T + 4), 10, v(T + 3)))
    p.append(valu("v_add_u32", v(T + 5), s(S_W6), v(T + 5)))
    p.append(valu("v_xor_b32", v(T + 6), v(T + 2), v(T + 1)))
    p.append(valu("v_lshl_add_u32", v(V_XR), v(T + 6), 4, v(T + 5)))
    p.append(valu("v_xor_b32", v(V_XR + 1), 64, v(V_XR)))
    p.append(valu("v_mul_u32_u24", v(T + 5), 3072, v(T + 4)))
    p.append(valu("v_add_u32", v(T + 5), v(T + 5), v(T + 3)))
    p.append(valu("v_and_b32", v(T + 6), 1, v(T + 2)))
    p.append(valu("v_lshrrev_b32", v(T + 7), 1, v(T + 2)))
    p.append(valu("v_lshl_add_u32", v(T + 6), v(T + 6), 1, v(T + 7)))
    p.append(valu("v_xor_b32", v(T + 6), v(T + 6), v(T + 1)))
    p.append(valu("v_lshl_add_u32", v(V_KR), v(T + 6), 4, v(T + 5)))
    p.append(valu("v_xor_b32", v(V_KR + 1), 64, v(V_KR)))
    return p

def lane_addr_dma(need):
    T = V_T; p = []
    p.append(valu("v_lshrrev_b32", v(T), 3, v(0)))
    p.append(salu("s_lshl_b32", s(S_T), s(S_W), 3))
    p.append(valu("v_add_u32", v(T + 1), s(S_T), v(T)))
    p.append(valu("v_and_b32", v(T + 2), 7, v(0)))
    p.append(valu("v_and_b32", v(T + 3), 6, v(T + 1)))
    p.append(valu("v_xor_b32", v(T + 3), v(T + 3), v(T + 2)))
    p.append(valu("v_lshlrev_b32", v(T + 4), 4, v(T + 3)))
    if "W" in need:
        p.append(valu("v_bfe_u32", v(T + 5), v(T + 1), 2, 2))
        p.append(valu("v_lshlrev_b32", v(T + 5), 3, v(T + 5)))
        p.append(valu("v_lshrrev_b32", v(T + 6), 4, v(T + 1)))
        p.append(valu("v_lshl_add_u32", v(T + 5), v(T + 6), 2, v(T + 5)))
        p.append(valu("v_and_b32", v(T + 6), 3, v(T + 1)))
        p.append(valu("v_add_u32", v(T + 5), v(T + 5), v(T + 6)))
        p.append(valu("v_mul_u32_u24", v(T + 5), 12288, v(T + 5)))
        p.append(valu("v_add_u32", v(V_DW), v(T + 5), v(T + 4)))
    if "X" in need:
        p.append(valu("v_lshrrev_b32", v(T + 5), 1, v(T)))
        p.append(valu("v_add_u32", v(T + 5), 6, v(T + 5)))
        p.append(valu("v_and_b32", v(T + 5), 7, v(T + 5)))
        p.append(valu("v_xor_b32", v(T + 5), v(T + 5), v(T + 2)))
        p.append(salu("s_mul_i32", s(S_T + 1), s(S_W), 48, scc=False))
        p.append(valu("v_add_u32", v(T + 6), s(S_T + 1), v(T)))
        p.append(valu("v_mul_u32_u24", v(T + 6), 1280, v(T + 6)))
        p.append(valu("v_lshl_add_u32", v(V_DX), v(T + 5), 4, v(T + 6)))
        p.append(valu("v_xor_b32", v(V_DX + 1), 64, v(V_DX)))
        p.append(valu("v_add_u32", v(V_DX + 1), 10240, v(V_DX + 1)))
    if "V" in need:
        p.append(valu("v_mul_u32_u24", v(T + 5), 384, v(T + 1)))
        p.append(valu("v_add_u32", v(V_DV), v(T + 5), v(T + 4)))
        p.append(valu("v_bfe_u32", v(T + 6), v(T + 1), 1, 3))
        p.append(valu("v_add_u32", v(T + 6), 6, v(T + 6)))
        p.append(valu("v_and_b32", v(T + 6), 7, v(T + 6)))
        p.append(valu("v_xor_b32", v(T + 6), v(T + 6), v(T + 2)))
        p.append(valu("v_lshl_add_u32", v(V_DK), v(T + 6), 4, v(T + 5)))
    if "O" in need:
        p.append(valu("v_mul_u32_u24", v(T + 5), 1280, v(T + 1)))
        p.append(valu("v_add_u32", v(V_DO), v(T + 5), v(T + 4)))
        p.append(valu("v_lshrrev_b32", v(T + 6), 2, v(T + 3)))
        p.append(valu("v_lshlrev_b32", v(T + 6), 30, v(T + 6)))
        p.append(valu("v_add_u32", v(V_DO2), v(V_DO), v(T + 6)))
    return p

def acc(f, qb): return V_ACC + (f * 3 + qb) * 4
def xfr(t, qb): return A_X + (t % 12) * 12 + qb * 4
def qfr(sx, qb): return A_Q + (sx * 3 + qb) * 4
def sreg(i, qb, kb): return V_S + (i & 1) * 24 + qb * 8 + kb * 4

def tr_reads(blk, aset, ring, name, u, fslot, first_use, lo_gap, q="ds", after=()):
    base = ring.pos[name] * SLOT
    pre = aset.need(base, base + SLOT - 1)
    e = max(first_use - cfg.EARLY, lo_gap)
    d = first_use - cfg.LEAD
    for x in pre: blk.fill(q, x, earliest=e, deadline=max(d, e), after=after)
    for half in range(2):
        off = base - aset.base + (u >> 2) * 1024 + half * 6144
        blk.fill(q, ds_tr("a", A_FR + 4 * fslot + 2 * half, V_TR + (u & 3), off, tag=name), earliest=e, deadline=max(d, e), after=after)

def k_reads(blk, aset, ring, name, kb, sx, fslot, first_use, lo_gap, q="ds", after=()):
    base = ring.pos[name] * SLOT
    pre = aset.need(base, base + SLOT - 1)
    e = max(first_use - cfg.EARLY, lo_gap)
    d = first_use - cfg.LEAD
    for x in pre: blk.fill(q, x, earliest=e, deadline=max(d, e), after=after)
    off = base - aset.base + kb * 6144 + (sx >> 1) * 1024
    blk.fill(q, ds_b128("a", A_FR + 4 * fslot, V_KR + (sx & 1), off, tag=name), earliest=e, deadline=max(d, e), after=after)

def x_reads(aset, ring, p):
    base = ring.pos[("X", p)] * SLOT
    out = aset.need(base, base + 6143)
    for ks in range(2):
        for qb in range(3):
            out.append(ds_b128("a", xfr(2 * p + ks, qb), V_XR + ks, base - aset.base + qb * 2048, tag=("X", p)))
    return out

def gen_k1():
    p = common_prologue(256)
    p += lane_addr_dma("WXV")
    p.append(waitcnt(lgkm=0))
    T = S_T
    p.append(salu("s_mul_i32", s(T), s(S_B), 245760, scc=False)); p += srd(S_X, S_PTR + 0, T, 245760)
    p.append(salu("s_mul_i32", s(T), s(S_H), 384, scc=False)); p += srd(S_WQ, S_PTR + 6, T, 639 * 12288 + 384)
    ring = Ring(cfg.NXP)
    ring.xreq = [("X", i) for i in range(10)]
    ring.req = [("W", t) for t in range(20)] + [("K", 0)]
    for i in range(16):
        if i < 15: ring.req.append(("K", i + 1))
        ring.req.append(("V", i))
    for i in range(10): ring.when[("X", i)] = cfg.pull[i] - 0.5 + i * 1e-3
    for t in range(20): ring.when[("W", t)] = t
    for i in range(16):
        ring.when[("K", i)] = 20 + 2 * i - 1.5; ring.when[("V", i)] = 20 + 2 * i + 1
    p += ring.pump_plain()
    p.append(salu("s_lshl_b32", s(T), s(S_B), 5)); p.append(salu("s_add_u32", s(T), s(T), s(S_H)))
    p.append(salu("s_mul_i32", s(T + 1), s(T), 196608, scc=False))
    p += srd(S_K, S_PTR + 2, T + 1, 196608); p += srd(S_V, S_PTR + 4, T + 1, 196608)
    p.append(salu("s_mul_i32", s(T + 1), s(T), OBUF_CU, scc=False)); p += srd(S_OB, S_PTR + 14, T + 1, OBUF_CU)
    p += lane_addr_tr() + lane_addr_kx()
    atr = AddrSet([V_TR + e for e in range(4)]); akr = AddrSet([V_KR, V_KR + 1]); axr = AddrSet([V_XR, V_XR + 1])

    grp0 = [("X", q) for q in range(10) if cfg.pull[q] == 0] + [("W", 0)]
    p += [wait_tag(*grp0), barrier()]
    p += x_reads(axr, ring, 0)
    blk = Block()
    for t in range(20):
        for f in range(12):
            for qb in range(3):
                blk.add_mfma(mfma("v", acc(f, qb), "a", A_FR + 4 * f, "a", xfr(t, qb), "v" if t else None, acc(f, qb)))
    bar = {0: None}; bgap = {0: -2}
    for t in range(20):
        m0 = 36 * t
        aft = [(bar[t], 0)] if bar[t] else []
        for f in range(12):
            fu = m0 + 3 * f
            lo = max(bgap[t] + 1, 36 * (t - 1) + 3 * f + 2 if t else -1)
            tr_reads(blk, atr, ring, ("W", t), f, f, fu, lo, after=aft)
            if f == 5:
                for q in range(1, 10):
                    if cfg.pull[q] == t:
                        assert 2 * q - 12 < t and 2 * q > t
                        for x in x_reads(axr, ring, q):
                            blk.fill("dsx", x, earliest=max(m0, bgap[t] + 1), deadline=m0 + 16, after=aft)
        g = m0 + 36 - cfg.EARLY - 1
        if t < 19:
            need = [("X", q) for q in range(10) if cfg.pull[q] == t + 1] + [("W", t + 1)]
        else:
            need = [("K", 0)]
        rel = [("X", q) for q in range(10) if cfg.pull[q] == t]
        if t >= 1: rel.append(("W", t - 1))
        bar[t + 1] = blk.fill("sync", [wait_tag(*need), barrier(rel)], earliest=g, deadline=g); bgap[t + 1] = g
        for n in rel: ring.release(n)
        ring.pump_block(blk, g + 1, min(g + 34, 719), [(bar[t + 1], 0)])
    p += blk.schedule()
    print("Q-proj over budget cycles:", blk.over, file=sys.stderr)

    p.append(valu("v_mov_b32", v(V_T), f2u(SCALE)))
    p.append(valu("v_mov_b32", v(V_T + 1), f2u(SCALE)))
    for sx in range(6):
        for qb in range(3):
            t0 = V_T2 + ((sx * 3 + qb) % 4) * 4
            a0, a1 = acc(2 * sx, qb), acc(2 * sx + 1, qb)
            for r in (a0, a0 + 2, a1, a1 + 2): p.append(vpkmul(r, r, V_T))
            p += [vcvt(t0, a0, a0 + 1), vcvt(t0 + 1, a0 + 2, a0 + 3), vcvt(t0 + 2, a1, a1 + 1), vcvt(t0 + 3, a1 + 2, a1 + 3)]
            p += [swap16(t0, t0 + 2), swap16(t0 + 1, t0 + 3)]
            p += [accw(qfr(sx, qb) + k, t0 + k) for k in range(4)]

    def add_qk(blk, i, first):
        b0 = len(blk.mf)
        for kb in range(2):
            for sx in range(6):
                for qb in range(3):
                    d = sreg(i, qb, kb)
                    if sx == 0:
                        ck, c = (None, 0) if first else ("v", V_NM + 4 * qb)
                    else: ck, c = "v", d
                    blk.add_mfma(mfma("v", d, "a", A_FR + 4 * (kb * 6 + sx), "a", qfr(sx, qb), ck, c))
        return b0
    def add_pv(blk, i):
        b0 = len(blk.mf)
        for f in range(12):
            for qb in range(3):
                blk.add_mfma(mfma("v", acc(f, qb), "a", A_FR + 4 * f, "v", sreg(i, qb, 0), "v" if i else None, acc(f, qb)))
        return b0
    def softmax_fill(blk, i, ready, dl, sub=False):
        lo = min(ready(qb, 0) for qb in range(3))
        n = 24; k = 0
        for qb in range(3):
            prevc = None
            for pr in range(4):
                r0 = sreg(i, qb, 0) + 2 * pr
                its = []
                for e in range(2):
                    tgt = lo + (dl - lo) * k // n; k += 1
                    er = ready(qb, pr >> 1)
                    dep = []
                    if sub:
                        sb = blk.fill("sub", valu("v_add_f32", v(r0 + e), v(V_NM + 4 * qb), v(r0 + e)), earliest=er, prio=tgt - 1, deadline=dl)
                        dep = [(sb, 0)]
                    ex = blk.fill("exp", vexp(r0 + e, r0 + e), earliest=er, prio=tgt, deadline=dl, after=dep)
                    if i == 0 and pr == 0 and e == 0:
                        ad = blk.fill("post", valu("v_mov_b32", v(V_L + qb), v(r0 + e)), prio=tgt + 1, deadline=dl, after=[(ex, 1)])
                    else:
                        ad = blk.fill("post", vadd(V_L + qb, v(V_L + qb), v(r0 + e)), prio=tgt + 1, deadline=dl, after=[(ex, 1)])
                blk.fill("post", vcvt(sreg(i, qb, 0) + pr, r0, r0 + 1), prio=tgt + 2, deadline=dl)

    blk = Block()
    b0 = add_qk(blk, 0, True)
    for kb in range(2):
        for sx in range(6):
            k_reads(blk, akr, ring, ("K", 0), kb, sx, kb * 6 + sx, b0 + kb * 18 + sx * 3, -1)
    g = 20
    rel = [("W", 19)]
    br = blk.fill("sync", [wait_tag(("K", 1), ("V", 0)), barrier(rel)], earliest=g, deadline=g)
    for n in rel: ring.release(n)
    ring.pump_block(blk, g + 1, 35, [(br, 0)])
    p += blk.schedule()
    for qb in range(3):
        r = sreg(0, qb, 0); t0 = V_T + 2 * qb
        p.append(valu("v_max3_f32", v(t0), v(r), v(r + 1), v(r + 2)))
        p.append(valu("v_max3_f32", v(t0), v(t0), v(r + 3), v(r + 4)))
        p.append(valu("v_max3_f32", v(t0), v(t0), v(r + 5), v(r + 6)))
        p.append(valu("v_max_f32", v(t0), v(t0), v(r + 7)))
        p.append(valu("v_mov_b32", v(t0 + 1), v(t0)))
    for qb in range(3): p.append(swap32(V_T + 2 * qb, V_T + 2 * qb + 1))
    for qb in range(3):
        t0 = V_T + 2 * qb
        p.append(valu("v_max_f32", v(t0), v(t0), v(t0 + 1)))
        p.append(valu("v_mov_b32", v(t0 + 1), v(t0)))
    for qb in range(3): p.append(swap16(V_T + 2 * qb, V_T + 2 * qb + 1))
    for qb in range(3):
        t0 = V_T + 2 * qb
        p.append(valu("v_max_f32", v(t0), v(t0), v(t0 + 1)))
        for k in range(4): p.append(valu("v_sub_f32", v(V_NM + 4 * qb + k), 0, v(t0)))

    blk = Block()
    qk0 = {}; pv0 = {}
    for i in range(16):
        if i < 15: qk0[i + 1] = add_qk(blk, i + 1, False)
        pv0[i] = add_pv(blk, i)
    nm = len(blk.mf)
    lastuse = {f: -1 for f in range(12)}
    bar = None; bgap = -2
    softmax_fill(blk, 0, lambda qb, kb: -1, pv0[0] - 2, sub=True)
    for i in range(16):
        aft = [(bar, 0)] if bar else []
        if i < 15:
            for kb in range(2):
                for sx in range(6):
                    f = kb * 6 + sx; fu = qk0[i + 1] + 3 * f
                    k_reads(blk, akr, ring, ("K", i + 1), kb, sx, f, fu, max(bgap + 1, lastuse[f]), after=aft)
                    lastuse[f] = fu + 2
        for f in range(12):
            fu = pv0[i] + 3 * f
            tr_reads(blk, atr, ring, ("V", i), f, f, fu, max(bgap + 1, lastuse[f]), after=aft)
            lastuse[f] = fu + 2
        if i < 15:
            softmax_fill(blk, i + 1, lambda qb, kb: qk0[i + 1] + 18 * kb + 15 + qb + 2, pv0[i + 1] - 2)
            g = pv0[i] + 36 - cfg.EARLY - 1
            need = [("V", i + 1)] + ([("K", i + 2)] if i + 2 < 16 else [])
            rel = [("K", i + 1)] + ([("V", i - 1)] if i >= 1 else []) + ([("K", 0)] if i == 0 else [])
            bar = blk.fill("sync", [wait_tag(*need), barrier(rel)], earliest=g, deadline=g); bgap = g
            for n in rel: ring.release(n)
            ring.pump_block(blk, g + 1, min(g + 60, nm - 1), [(bar, 0)])
    p += blk.schedule()
    print("attention over budget cycles:", blk.over, file=sys.stderr)

    for qb in range(3): p.append(valu("v_mov_b32", v(V_T + qb), v(V_L + qb)))
    for qb in range(3): p.append(swap32(V_L + qb, V_T + qb))
    for qb in range(3):
        p.append(vadd(V_L + qb, v(V_L + qb), v(V_T + qb)))
        p.append(valu("v_mov_b32", v(V_T + qb), v(V_L + qb)))
    for qb in range(3): p.append(swap16(V_L + qb, V_T + qb))
    for qb in range(3): p.append(vadd(V_L + qb, v(V_L + qb), v(V_T + qb)))
    for qb in range(3): p.append(vrcp(V_T + 2 * qb, V_L + qb))
    p.append(salu("s_mul_i32", s(S_T), s(S_W), 18432, scc=False))
    p.append(valu("v_add_u32", v(V_T + 7), s(S_T), v(V_LIN)))
    for sx in range(6):
        for qb in range(3):
            fr = sx * 3 + qb
            t0 = V_S + (fr % 12) * 4
            a0, a1 = acc(2 * sx, qb), acc(2 * sx + 1, qb)
            for r in (a0, a0 + 2, a1, a1 + 2): p.append(vpkmul(r, r, V_T + 2 * qb))
            p += [vcvt(t0, a0, a0 + 1), vcvt(t0 + 1, a0 + 2, a0 + 3), vcvt(t0 + 2, a1, a1 + 1), vcvt(t0 + 3, a1 + 2, a1 + 3)]
            if fr % 4 == 0: p.append(smov(s(S_SO), fr * 1024))
            p.append(gstore("v", t0, 4, V_T + 7, S_OB, s(S_SO), (fr % 4) * 1024))
    return p

def gen_k2():
    p = common_prologue(256)
    p += lane_addr_dma("O")
    p.append(waitcnt(lgkm=0))
    T = S_T
    p.append(salu("s_mul_i32", s(T), s(S_G), 768 * 1280, scc=False))
    p.append(salu("s_mul_i32", s(T + 1), s(S_J), 320, scc=False))
    p.append(salu("s_add_u32", s(T), s(T), s(T + 1)))
    p += srd(S_WO, S_PTR + 8, T, 767 * 1280 + 320)
    for hh in range(4):
        p.append(salu("s_add_u32", s(T), s(S_J), hh)); p.append(salu("s_and_b32", s(T), s(T), 3))
        p.append(salu("s_mul_i32", s(S_HO + hh), s(T), OBUF_CU, scc=False))
        p.append(salu("s_mul_i32", s(S_HO + 4 + hh), s(T), 192 * 1280, scc=False))
    p.append(salu("s_lshl_b32", s(T), s(S_B), 5)); p.append(salu("s_lshl_b32", s(T + 1), s(S_G), 2))
    p.append(salu("s_add_u32", s(T), s(T), s(T + 1)))
    p.append(salu("s_mul_i32", s(T + 1), s(T), OBUF_CU, scc=False)); p += srd(S_OB, S_PTR + 14, T + 1, 4 * OBUF_CU)
    p.append(salu("s_mul_i32", s(T), s(S_W), 18432, scc=False))
    p.append(valu("v_add_u32", v(V_T2), s(T), v(V_LIN)))
    ring = Ring(0)
    ring.req = [("O", u) for u in range(24)]
    for u in range(24): ring.when[("O", u)] = u
    V_OWN = 48; V_ACC2 = 120; A_OB = 40
    def bfr(u, qb):
        hh, sx = divmod(u, 6); fr = sx * 3 + qb
        return ("v", V_OWN + 4 * fr) if hh == 0 else ("a", A_OB + (hh - 1) * 72 + 4 * fr)
    def oloads(hh):
        out = []
        for fr in range(18):
            k, r = bfr(hh * 6 + fr // 3, fr % 3)
            pre = []
            if fr % 4 == 0:
                so = ring.so(); pre.append(salu("s_add_u32", s(so), s(S_HO + hh), fr * 1024))
            out.append((pre, gload(k, r, 4, V_T2, S_OB, s(so), (fr % 4) * 1024)))
        return out
    names = ring.take()
    its0 = []
    for n in names[:2]: its0 += ring.dma_items(n)
    its0 += oloads(0)
    for n in names[2:]: its0 += ring.dma_items(n)
    for pre, d in its0: p += pre + [d]
    p.append(salu("s_lshl_b32", s(T), s(S_B), 2)); p.append(salu("s_add_u32", s(T), s(T), s(S_J)))
    p.append(salu("s_lshl_b32", s(T), s(T), 3)); p.append(salu("s_add_u32", s(T), s(T), s(S_G)))
    p.append(salu("s_mul_i32", s(T), s(T), PART_CU, scc=False)); p.append(salu("s_add_u32", s(T), s(T), PART_OFF))
    p += srd(S_PB, S_PTR + 14, T, PART_CU)
    p += lane_addr_tr()
    atr = AddrSet([V_TR + e for e in range(4)])
    p += [wait_tag(("O", 0)), barrier()]
    blk = Block()
    def acc2(nt, qb): return V_ACC2 + (nt * 3 + qb) * 4
    for u in range(24):
        for nt in range(10):
            for qb in range(3):
                k, r = bfr(u, qb)
                blk.add_mfma(mfma("v", acc2(nt, qb), "a", A_FR + 4 * nt, k, r, "v" if u else None, acc2(nt, qb)))
    bar = None; bgap = -2
    for u in range(24):
        m0 = 30 * u
        aft = [(bar, 0)] if bar else []
        for nt in range(10):
            fu = m0 + 3 * nt
            tr_reads(blk, atr, ring, ("O", u), nt, nt, fu, max(bgap + 1, 30 * (u - 1) + 3 * nt + 2 if u else -1), after=aft)
        if u in (0, 2, 4):
            prev = None
            for k, (pre, d) in enumerate(oloads(u // 2 + 1)):
                e = m0 + 2 * k
                for x in pre: prev = blk.fill("dma", x, earliest=e, prio=e, deadline=m0 + 59)
                prev = blk.fill("dma", d, earliest=e, prio=e, deadline=m0 + 59)
        if u < 23:
            g = m0 + 30 - cfg.EARLY - 1
            rel = [("O", u - 1)] if u >= 1 else []
            bar = blk.fill("sync", [wait_tag(("O", u + 1)), barrier(rel)], earliest=g, deadline=g); bgap = g
            for n in rel: ring.release(n)
            ring.pump_block(blk, g + 1, g + 59, [(bar, 0)])
    p += blk.schedule()
    print("O-proj over budget cycles:", blk.over, file=sys.stderr)
    p.append(salu("s_mul_i32", s(T), s(S_W), 30720, scc=False))
    p.append(valu("v_add_u32", v(V_T2), s(T), v(V_LIN)))
    for tt in range(30):
        if tt % 4 == 0: p.append(smov(s(S_SO), tt * 1024))
        p.append(gstore("v", V_ACC2 + 4 * tt, 4, V_T2, S_PB, s(S_SO), (tt % 4) * 1024))
    return p

def gen_k3():
    p = common_prologue(240)
    T = S_T
    p.append(salu("s_lshl_b32", s(T), s(2), 2)); p.append(salu("s_add_u32", s(T), s(T), s(S_W)))
    p.append(salu("s_mul_hi_u32", s(T + 1), s(T), (2**32 + 29) // 30, scc=False))
    p.append(salu("s_mul_i32", s(T + 2), s(T + 1), 30, scc=False))
    p.append(salu("s_sub_u32", s(T + 2), s(T), s(T + 2))); p.append(salu("s_lshl_b32", s(T + 2), s(T + 2), 2))
    p.append(waitcnt(lgkm=0))
    p.append(salu("s_mul_i32", s(T + 3), s(T + 1), 8 * PART_CU, scc=False)); p.append(salu("s_add_u32", s(T + 3), s(T + 3), PART_OFF))
    p += srd(S_PB, S_PTR + 14, T + 3, 8 * PART_CU)
    p += srd(S_OUT, S_PTR + 10, None, 8 * 192 * 1280)
    p.append(salu("s_lshl_b32", s(T + 3), s(T + 2), 10))
    p.append(valu("v_add_u32", v(1), s(T + 3), v(V_LIN)))
    for gq in range(8):
        p.append(smov(s(S_SO + (gq & 3)), gq * PART_CU))
        for k in range(4):
            p.append(gload("v", 32 + (gq * 4 + k) * 4, 4, 1, S_PB, s(S_SO + (gq & 3)), k * 1024))
    p.append(valu("v_and_b32", v(2), 15, v(0))); p.append(valu("v_mul_u32_u24", v(2), 1280, v(2)))
    p.append(valu("v_lshrrev_b32", v(3), 4, v(0))); p.append(valu("v_lshl_add_u32", v(2), v(3), 3, v(2)))
    p.append(salu("s_lshr_b32", s(T + 4), s(T + 1), 2)); p.append(salu("s_and_b32", s(T + 5), s(T + 1), 3))
    p.append(salu("s_mul_i32", s(T + 4), s(T + 4), 192 * 1280, scc=False))
    p.append(salu("s_mul_i32", s(T + 5), s(T + 5), 320, scc=False))
    p.append(salu("s_add_u32", s(T + 4), s(T + 4), s(T + 5)))
    for k in range(4):
        p.append(salu("s_add_u32", s(T + 6), s(T + 2), k))
        p.append(salu("s_mul_hi_u32", s(T + 7), s(T + 6), (2**32 + 29) // 30, scc=False))
        p.append(salu("s_mul_i32", s(T + 8), s(T + 7), 30, scc=False)); p.append(salu("s_sub_u32", s(T + 8), s(T + 6), s(T + 8)))
        p.append(salu("s_mul_hi_u32", s(T + 9), s(T + 8), (2**32 + 2) // 3, scc=False))
        p.append(salu("s_mul_i32", s(T + 10), s(T + 9), 3, scc=False)); p.append(salu("s_sub_u32", s(T + 10), s(T + 8), s(T + 10)))
        p.append(salu("s_mul_i32", s(T + 7), s(T + 7), 48 * 1280, scc=False))
        p.append(salu("s_mul_i32", s(T + 10), s(T + 10), 16 * 1280, scc=False))
        p.append(salu("s_lshl_b32", s(T + 9), s(T + 9), 5))
        p.append(salu("s_add_u32", s(T + 7), s(T + 7), s(T + 10))); p.append(salu("s_add_u32", s(T + 7), s(T + 7), s(T + 9)))
        p.append(salu("s_add_u32", s(S_HO + k), s(T + 7), s(T + 4)))
    for gq in range(1, 8):
        for k in range(4):
            for r in range(4):
                p.append(vadd(32 + k * 4 + r, v(32 + k * 4 + r), v(32 + (gq * 4 + k) * 4 + r)))
    for k in range(4):
        p.append(vcvt(8 + 2 * k, 32 + 4 * k, 33 + 4 * k)); p.append(vcvt(9 + 2 * k, 34 + 4 * k, 35 + 4 * k))
        p.append(gstore("v", 8 + 2 * k, 2, 2, S_OUT, s(S_HO + k), 0))
    return p

KD = """.amdhsa_kernel {name}
  .amdhsa_next_free_vgpr {nv}
  .amdhsa_next_free_sgpr 102
  .amdhsa_accum_offset {acc}
  .amdhsa_group_segment_fixed_size 0
  .amdhsa_kernarg_size 64
  .amdhsa_user_sgpr_count 2
  .amdhsa_user_sgpr_kernarg_segment_ptr 1
  .amdhsa_system_sgpr_workgroup_id_x 1
  .amdhsa_float_denorm_mode_32 3
.end_amdhsa_kernel
"""

def finish(prog, name):
    prog = insert_waits(prog)
    prog = fix_hazards(prog, verbose=False)
    print(name, "instrs", len(prog), "est cycles", estimate_cycles(prog), file=sys.stderr)
    t = text(prog).replace("%KN%", name)
    return f".globl {name}\n.p2align 8\n.type {name},@function\n{name}:\n{t}\nL_end_{name}:\n  s_endpgm\n"

def build():
    ks = [("qattn_kernel", gen_k1(), 256, LDS_BYTES, 512, 256), ("oproj_kernel", gen_k2(), 256, LDS_BYTES, 512, 256),
          ("reduce_kernel", gen_k3(), 240, 0, 160, 160)]
    out = []
    for name, _, grid, lds, _, _ in ks:
        out.append(f"; @launch kernel={name} grid=({grid},1,1) block=(256,1,1) lds={lds}")
    out.append('.amdgcn_target "amdgcn-amd-amdhsa--gfx950"\n.text')
    for name, prog, *_ in ks: out.append(finish(prog, name))
    out.append('.section .rodata,"a"')
    for name, _, _, _, nv, ac in ks:
        out.append(".p2align 6\n" + KD.format(name=name, nv=nv, acc=ac))
    return "\n".join(out)

if __name__ == "__main__":
    dst = sys.argv[1] if len(sys.argv) > 1 else "standalone__gqa_block_cached__near_ridge.s"
    open(dst, "w").write(build())
```
